```python
import torch

def _softmax(x, axis=-1):
    return torch.softmax(x, dim=axis)
def _gelu(x):
    return torch.nn.functional.gelu(x, approximate="tanh")
def _silu(x):
    return torch.nn.functional.silu(x)
def _sigmoid(x):
    return torch.sigmoid(x)
def _layernorm(x, axis=-1, eps=1e-5):
    m = x.mean(dim=axis, keepdim=True)
    v = x.var(dim=axis, keepdim=True, unbiased=False)
    return (x - m) / torch.sqrt(v + eps)
def _scatter_add(tgt, idx, src, axis=0):
    return tgt.clone().index_add_(axis, idx, src)
def _segment_sum(src, seg, n):
    out = torch.zeros((n,) + src.shape[1:], dtype=src.dtype)
    return out.index_add_(0, seg, src)
def _pad(x, pw):
    flat = tuple(v for pair in reversed(pw) for v in pair)
    return torch.nn.functional.pad(x, flat)

kernel_name = 'sequential_preLN__compressed_kv_cla__dense_activation_silu__prompt'

def setup_inputs():

    _w = (lambda a: (lambda t: t.to(torch.bfloat16) if t.is_floating_point() else t)(torch.as_tensor(a)))
    def _A_setup():
        B, H, Sq, Sk, D, M = 1, 32, 2048, 2048, 128, 1024
        Dc = 4 * D
        return {
            "x": _w((lambda *s: torch.randn(*s, dtype=torch.bfloat16) * 0.05)(B, Sq, M)),
            "c_kv": _w((lambda *s: torch.randn(*s, dtype=torch.bfloat16) * 0.4)(B, Sk, Dc)),
            "w_q": _w((lambda *s: torch.randn(*s, dtype=torch.bfloat16) * 1.6)(M, H, D) * (M ** -0.5)),
            "w_uk": _w((lambda *s: torch.randn(*s, dtype=torch.bfloat16) * 1.6)(Dc, H, D) * (Dc ** -0.5)),
            "w_uv": _w((lambda *s: torch.randn(*s, dtype=torch.bfloat16) * 0.4)(Dc, H, D) * (Dc ** -0.5)),
            "w_o": _w((lambda *s: torch.randn(*s, dtype=torch.bfloat16) * 0.4)(H, D, M) * ((H * D) ** -0.5)),
        }
    _A_in = _A_setup()

    def _B_setup():
        B, S, D, F = 1, 2048, 1024, 3584
        return {
            "x": _w((lambda *s: torch.randn(*s, dtype=torch.bfloat16) * 0.05)(B, S, D)),
            "w1": _w((lambda *s: torch.randn(*s, dtype=torch.bfloat16) * 0.8)(D, F) * (D ** -0.5)),
            "w2": _w((lambda *s: torch.randn(*s, dtype=torch.bfloat16) * 0.1)(F, D) * (F ** -0.5)),
        }
    _B_in = _B_setup()

    return {
        "A_x": _A_in["x"],
        "A_c_kv": _A_in["c_kv"],
        "A_w_q": _A_in["w_q"],
        "A_w_uk": _A_in["w_uk"],
        "A_w_uv": _A_in["w_uv"],
        "A_w_o": _A_in["w_o"],
        "B_x": _B_in["x"],
        "B_w1": _B_in["w1"],
        "B_w2": _B_in["w2"],
    }

def reference(A_x, A_c_kv, A_w_q, A_w_uk, A_w_uv, A_w_o, B_x, B_w1, B_w2):
    def _A_ref(x, c_kv, w_q, w_uk, w_uv, w_o):
        B, Sq, M = x.shape[0], x.shape[1], x.shape[2]
        Sk = c_kv.shape[1]
        H, D = w_q.shape[1], w_q.shape[2]
        q = torch.einsum("bqm,mhd->bhqd", x, w_q)
        k = torch.einsum("bkc,chd->bhkd", c_kv, w_uk)
        v = torch.einsum("bkc,chd->bhkd", c_kv, w_uv)
        scores = torch.einsum("bhqd,bhkd->bhqk", q, k) * (D ** -0.5)
        off = Sk - Sq
        qi = torch.arange(Sq)[:, None]
        kj = torch.arange(Sk)[None, :]
        cmask = kj <= (qi + off)
        scores = torch.where(cmask[None, None], scores, -1e9)
        p = _softmax(scores, axis=-1)
        ctx = torch.einsum("bhqk,bhkd->bhqd", p, v)
        return torch.einsum("bhqd,hdm->bqm", ctx, w_o)

    def _B_ref(x, w1, w2):
        h = torch.einsum("bsd,df->bsf", x, w1)
        h = _silu(h)
        out = torch.einsum("bsf,fd->bsd", h, w2)
        return out

    x = A_x
    h = x + _A_ref(_layernorm(x, axis=-1), A_c_kv, A_w_q, A_w_uk, A_w_uv, A_w_o)
    h2 = h + _B_ref(_layernorm(h, axis=-1), B_w1, B_w2)
    return h2
```

```python
import re

def v(i, n=1): return f"v{i}" if n == 1 else f"v[{i}:{i+n-1}]"
def a(i, n=1): return f"a{i}" if n == 1 else f"a[{i}:{i+n-1}]"
def s(i, n=1): return f"s{i}" if n == 1 else f"s[{i}:{i+n-1}]"
def r(f, i, n=1): return v(i, n) if f == 'v' else a(i, n)

_REG = re.compile(r'^(-|abs\()?([vas])(\d+)\)?$|^(-|abs\()?([vas])\[(\d+):(\d+)\]\)?$')

def regs_of(op):
    op = op.strip()
    if op in ('vcc', 'exec'): return [op + '_lo', op + '_hi']
    if op in ('vcc_lo', 'vcc_hi', 'exec_lo', 'exec_hi', 'm0', 'scc'): return [op]
    m = _REG.match(op)
    if not m: return []
    if m.group(2): return [m.group(2) + m.group(3)]
    return [m.group(5) + str(k) for k in range(int(m.group(6)), int(m.group(7)) + 1)]

TRANS = ('v_exp_f32', 'v_log_f32', 'v_rcp_f32', 'v_rsq_f32', 'v_sqrt_f32', 'v_sin_f32', 'v_cos_f32')

class Ins:
    __slots__ = ('text', 'mn', 'ops', 'kind', 'wr', 'rd', 'srcA', 'srcB', 'srcC', 'passes', 'states', 'stdata')
    def __init__(self, text):
        self.text = text
        t = text.split(';')[0].strip()
        self.wr = []; self.rd = []; self.srcA = self.srcB = self.srcC = []; self.passes = 0; self.states = 1; self.stdata = []
        if not t or t.endswith(':') or t.startswith('.'):
            self.kind = 'label' if t.endswith(':') else 'none'; self.mn = t; self.ops = []; self.states = 0
            return
        parts = t.split(None, 1)
        mn = parts[0]; self.mn = mn
        rest = parts[1] if len(parts) > 1 else ''
        ops = [o.strip() for o in rest.split(',')] if rest else []
        mods = []
        if ops:
            lp = ops[-1].split()
            ops[-1] = lp[0]; mods = lp[1:]
        self.ops = ops
        R = regs_of
        base = mn.replace('_e32', '').replace('_e64', '').replace('_dpp', '')
        if mn.startswith('v_mfma'):
            self.kind = 'mfma'
            self.wr = R(ops[0]); self.srcA = R(ops[1]); self.srcB = R(ops[2]); self.srcC = R(ops[3])
            self.rd = self.srcA + self.srcB + self.srcC
            self.passes = 8 if '32x32x16' in mn else 4 if '16x16x32' in mn else None
            assert self.passes
        elif mn.startswith('v_'):
            self.kind = 'valu'
            if base.startswith('v_cmp'):
                self.wr = R(ops[0]); self.rd = sum((R(o) for o in ops[1:]), [])
            elif base.startswith('v_permlane') and 'swap' in base:
                self.wr = R(ops[0]) + R(ops[1]); self.rd = list(self.wr); self.kind = 'permlane'
            elif base in ('v_readfirstlane_b32', 'v_readlane_b32'):
                self.wr = R(ops[0]); self.rd = sum((R(o) for o in ops[1:]), []); self.kind = 'readlane'
            elif base in ('v_add_co_u32', 'v_sub_co_u32', 'v_addc_co_u32'):
                self.wr = R(ops[0]) + R(ops[1]); self.rd = sum((R(o) for o in ops[2:]), [])
            else:
                self.wr = R(ops[0]); self.rd = sum((R(o) for o in ops[1:]), [])
                if base in ('v_fmac_f32', 'v_dot2c_f32_bf16', 'v_pk_fmac_f16'): self.rd += self.wr
                if base == 'v_cndmask_b32' and len(ops) == 3: self.rd += ['vcc_lo', 'vcc_hi']
            if base in TRANS: self.kind = 'trans'
            if any(m.startswith(('row_', 'quad_perm', 'wave_', 'row_bcast')) for m in mods) or mn.endswith('_dpp'):
                self.kind = 'dpp'; self.rd += self.wr
        elif mn.startswith('ds_'):
            self.kind = 'ds'
            if mn.startswith(('ds_read', 'ds_bpermute', 'ds_permute', 'ds_swizzle')):
                self.wr = R(ops[0]); self.rd = sum((R(o) for o in ops[1:]), [])
            else:
                self.rd = sum((R(o) for o in ops), [])
        elif mn.startswith(('buffer_', 'global_')):
            self.kind = 'vmem'
            if mn in ('buffer_wbl2', 'buffer_inv'):
                pass
            elif 'lds' in mods or mn.startswith('global_load_lds'):
                self.rd = sum((R(o) for o in ops), []) + ['m0']; self.kind = 'vmemlds'
            elif '_load' in mn:
                self.wr = R(ops[0]); self.rd = sum((R(o) for o in ops[1:]), [])
            else:
                self.rd = sum((R(o) for o in ops), [])
                if mn.startswith('buffer_store') or mn.startswith('buffer_atomic'):
                    d = R(ops[0])
                else:
                    d = R(ops[1])
                if len(d) >= 3: self.stdata = d
                if 'atomic' in mn and 'sc0' in mods: self.wr = R(ops[0])
        elif mn.startswith('s_'):
            self.kind = 'salu'
            if mn == 's_nop':
                self.states = int(ops[0], 0) + 1
            elif mn.startswith(('s_cmp', 's_cbranch', 's_branch', 's_waitcnt', 's_barrier', 's_endpgm', 's_setprio', 's_sleep', 's_bitcmp')):
                self.rd = sum((R(o) for o in ops), [])
                if mn.startswith(('s_cbranch', 's_branch', 's_endpgm')): self.kind = 'branch'
            elif mn.startswith(('s_setpc', 's_swappc')):
                self.kind = 'branch'
            else:
                self.wr = R(ops[0]); self.rd = sum((R(o) for o in ops[1:]), [])
                if 'saveexec' in mn: self.wr += ['exec_lo', 'exec_hi']
        else:
            raise ValueError("unknown instr: " + text)

VALUK = ('valu', 'trans', 'dpp', 'permlane', 'readlane')

def need(p, c):
    n = 0
    pw = set(p.wr)
    if p.kind in VALUK:
        vw = {x for x in pw if x[0] in 'va' and not x.startswith('vcc')}
        sw = pw - vw
        if c.kind == 'mfma' and vw & set(c.rd): n = max(n, 2)
        if c.kind == 'mfma' and ('exec_lo' in sw): n = max(n, 4)
        if c.kind == 'permlane' and vw & set(c.rd): n = max(n, 2)
        if c.kind == 'dpp' and vw & set(c.rd): n = max(n, 2)
        if c.kind == 'readlane' and vw & set(c.rd): n = max(n, 1)
        if p.kind == 'trans' and c.kind in VALUK and c.kind != 'trans' and vw & set(c.rd): n = max(n, 1)
        if p.kind == 'trans' and c.kind in ('trans',) and vw & set(c.rd): n = max(n, 1)
        if sw:
            if c.kind in VALUK and sw & set(c.rd): n = max(n, 2 if c.kind != 'readlane' else 4)
            if c.kind in ('vmem', 'vmemlds') and sw & set(c.rd): n = max(n, 5)
            if c.kind == 'dpp' and 'exec_lo' in sw: n = max(n, 5)
            if c.kind in ('salu', 'branch') and sw & set(c.rd): n = max(n, 1)
            if c.kind == 'branch' and c.mn.startswith('s_cbranch_vcc') and 'vcc_lo' in sw: n = max(n, 1)
    if p.kind == 'salu':
        if 'm0' in pw and c.kind == 'vmemlds': n = max(n, 1)
    if p.kind == 'mfma':
        P = p.passes
        if c.kind == 'mfma':
            if pw & set(c.srcA + c.srcB): n = max(n, {4: 8, 8: 12}[P])
            if pw & set(c.srcC):
                if not (p.wr == c.srcC and P == c.passes): n = max(n, {4: 6, 8: 10}[P])
            if pw & set(c.wr) and not (p.wr == c.wr and p.wr == c.srcC):
                n = max(n, {4: 6, 8: 10}[P])
        elif c.kind in VALUK or c.kind in ('ds', 'vmem', 'vmemlds'):
            if pw & (set(c.rd) | set(c.wr)): n = max(n, {4: 8, 8: 12}[P])
        if c.kind in VALUK and set(p.srcC) & set(c.wr): n = max(n, {4: 3, 8: 7}[P])
    if p.kind == 'vmem' and p.stdata:
        if set(p.stdata) & set(c.wr): n = max(n, 2 if c.kind in VALUK else 1)
    return n

MAXD = 12

class Prog:
    def __init__(self):
        self.L = []
    def __call__(self, text):
        for ln in text.split('\n'):
            if ln.strip(): self.L.append(Ins(ln.strip()))
    def label(self, name): self.L.append(Ins(name + ':'))
    def extend(self, lst):
        for x in lst: self(x)
    def nop(self, n):
        while n > 0:
            k = min(n, 16); self(f"s_nop {k-1}"); n -= k

def walk(L, i, targets):
    out = []
    stack = [(i - 1, 0, False)]
    seen = set()
    while stack:
        j, dist, viabr = stack.pop()
        while j >= 0 and dist <= MAXD:
            if (j, dist, viabr) in seen: break
            seen.add((j, dist, viabr))
            x = L[j]
            if x.kind == 'label':
                for k in targets.get(x.mn[:-1], []):
                    stack.append((k, dist, True))
            elif x.kind != 'none':
                if x.kind == 'branch' and x.mn in ('s_branch', 's_endpgm', 's_setpc_b64', 's_swappc_b64') and not viabr:
                    break
                out.append((x, dist)); dist += x.states
            viabr = False
            j -= 1
    return out

def fast_fix(L, verbose=False, name=''):
    total = 0
    for it in range(20):
        labels = {x.mn[:-1]: i for i, x in enumerate(L) if x.kind == 'label'}
        targets = {}
        for k, x in enumerate(L):
            if x.kind == 'branch' and x.ops and x.ops[0] in labels:
                targets.setdefault(x.ops[0], []).append(k)
        ins = []
        for i, c in enumerate(L):
            if c.kind in ('label', 'none'): continue
            worst = 0; who = None
            for (p, d) in walk(L, i, targets):
                n = need(p, c) - d
                if n > worst: worst = n; who = p
            if worst > 0:
                ins.append((i, worst, who, c))
        if not ins: return total
        last = -100; done = []
        for (i, w, who, c) in ins:
            if i - last > MAXD + 1:
                done.append((i, w)); last = i
                if verbose: print(f"[{name}] hazard: +{w} before '{c.text}' (after '{who.text}')")
        for (i, w) in reversed(done):
            L.insert(i, Ins(f"s_nop {w-1}")); total += 1
        if it > 8 and len(ins) > 0 and False: pass
    return total + fast_fix(L, verbose, name)

def interleave(mfmas, fillers, per=None, start=0, end=None):
    F = [(f, cost_of(f)) if isinstance(f, str) else f for f in fillers]
    n = len(mfmas)
    if end is None: end = n
    tot = sum(c for _, c in F)
    out = []; acc = 0; fi = 0
    for i, m in enumerate(mfmas):
        out.append(m)
        if i < start: continue
        frac = min(1.0, (i - start + 1) / max(1, end - start))
        while fi < len(F) and acc + F[fi][1] / 2.0 <= frac * tot + 1e-9:
            out.append(F[fi][0]); acc += F[fi][1]; fi += 1
    while fi < len(F):
        out.append(F[fi][0]); fi += 1
    return out

def cost_of(t):
    mn = t.split()[0]
    return 2 if mn in TRANS else 1

def kernel_text(name, prog, verbose=False):
    n = fast_fix(prog.L, verbose, name)
    body = []
    for x in prog.L:
        if x.kind == 'label' or x.text.startswith('.'): body.append(x.text)
        else: body.append("  " + x.text)
    return f".p2align 8\n{name}:\n" + "\n".join(body) + "\n", n

def descriptor(name, nv, acc, ns=96):
    return f""".p2align 6
.amdhsa_kernel {name}
  .amdhsa_next_free_vgpr {nv}
  .amdhsa_next_free_sgpr {ns}
  .amdhsa_accum_offset {acc}
  .amdhsa_group_segment_fixed_size 0
  .amdhsa_kernarg_size 96
  .amdhsa_user_sgpr_count 2
  .amdhsa_user_sgpr_kernarg_segment_ptr 1
  .amdhsa_system_sgpr_workgroup_id_x 1
  .amdhsa_float_denorm_mode_32 3
.end_amdhsa_kernel
"""
```

```python
from asmlib import *
MB = 1 << 20
WS_XN, WS_XR, WS_KF, WS_VF, WS_CTX, WS_H, WS_ST, WS_ACT = 0, 4*MB, 8*MB, 24*MB, 40*MB, 56*MB, 60*MB, 64*MB
WS_SIZE = 256*MB
ARG = dict(x=0, ckv=8, wq=16, wuk=24, wuv=32, wo=40, bx=48, w1=56, w2=64, out=72, dbg=80, ws=88)
SZ = dict(x=2048*1024*2, ckv=2048*512*2, wq=1024*4096*2, wuk=512*4096*2, wuv=512*4096*2, wo=4096*1024*2,
          w1=1024*3584*2, w2=3584*1024*2, out=2048*1024*2, ws=WS_SIZE, dbg=256)

def mfma(d, A, B, c=None):
    return f"v_mfma_f32_16x16x32_bf16 {d}, {A}, {B}, {d if c is None else c}"

def load_ptr(p, sreg, name):
    p(f"s_load_dwordx2 {s(sreg,2)}, s[0:1], {ARG[name]}")

def make_srd(p, srd, size):
    p(f"s_and_b32 {s(srd+1)}, {s(srd+1)}, 0xffff")
    p(f"s_mov_b32 {s(srd+2)}, {size}")
    p(f"s_mov_b32 {s(srd+3)}, 0x20000")

def make_ws_srd(p, srd, wsreg, off, size):
    p(f"s_add_u32 {s(srd)}, {s(wsreg)}, {off}")
    p(f"s_addc_u32 {s(srd+1)}, {s(wsreg+1)}, 0")
    make_srd(p, srd, size)

import os
STAMPS = os.environ.get('STAMPS', '0') == '1'
WS_STAMP = 200*MB
S_STAMP = 76
def stamp(p, k):
    if not STAMPS: return
    p(f"s_memrealtime {s(S_STAMP+2*k,2)}")
    p("s_waitcnt lgkmcnt(0)")
def stamp_cyc(p, k):
    if not STAMPS: return
    p(f"s_memtime {s(S_STAMP+2*k,2)}")
    p("s_waitcnt lgkmcnt(0)")
def stamp_init(p):
    if not STAMPS: return
    for k in range(16): p(f"s_mov_b32 {s(S_STAMP+k)}, 0")
def stamp_flush(p, kidx, swave):
    if not STAMPS: return
    p("s_waitcnt vmcnt(0)")
    stamp(p, 7)
    p(f"s_load_dwordx2 s[72:73], s[0:1], {ARG['ws']}")
    p("s_waitcnt lgkmcnt(0)")
    p(f"s_add_u32 s72, s72, {WS_STAMP + kidx*65536}")
    p("s_addc_u32 s73, s73, 0")
    make_srd(p, 72, 65536)
    for k in range(8): p(f"v_mov_b32 v{2+k}, {s(S_STAMP+2*k)}")
    p("s_lshl_b32 s92, s2, 2")
    p(f"s_add_u32 s92, s92, {s(swave)}")
    p("s_lshl_b32 s92, s92, 5")
    p("v_mov_b32 v0, s92")
    p("s_mov_b64 exec, 1")
    p("buffer_store_dwordx4 v[2:5], v0, s[72:75], 0 offen")
    p("buffer_store_dwordx4 v[6:9], v0, s[72:75], 0 offen offset:16")
```

```python
import sys, importlib
sys.path.insert(0, 'gen')
from common import *
HEADER = open('sequential_preLN__compressed_kv_cla__dense_activation_silu__prompt.s.ref').read().split('; Override launch')[0]

def build(kernels, out, verbose=False):
    t = HEADER
    for (name, p, nv, acc, lds, grid) in kernels:
        t += f"; @launch kernel={name} grid=({grid},1,1) block=(256,1,1) lds={lds}\n"
    t += '.amdgcn_target "amdgcn-amd-amdhsa--gfx950"\n.text\n'
    seen = set()
    for (name, p, nv, acc, lds, grid) in kernels:
        if name in seen: continue
        seen.add(name)
        k, n = kernel_text(name, p, verbose)
        print(f"{name}: {len(p.L)} lines, {n} hazard nops inserted")
        t += f".globl {name}\n.type {name},@function\n" + k
    t += '.section .rodata,"a"\n'
    seen = set()
    for (name, p, nv, acc, lds, grid) in kernels:
        if name in seen: continue
        seen.add(name)
        t += descriptor(name, nv, acc)
    open(out, 'w').write(t)

if __name__ == '__main__':
    out = sys.argv[1]
    ks = sys.argv[2].split(',')
    verbose = '-v' in sys.argv
    kernels = []
    for k in ks:
        m = importlib.import_module(k)
        kernels.append(getattr(m, 'gen_' + k)())
    build(kernels, out, verbose)
```
